```python
import torch

def _softmax(x, axis=-1):
    return torch.softmax(x, dim=axis)

def _gelu(x):
    return torch.nn.functional.gelu(x, approximate='tanh')

def _silu(x):
    return torch.nn.functional.silu(x)

def _sigmoid(x):
    return torch.sigmoid(x)

def _layernorm(x, axis=-1, eps=1e-05):
    m = x.mean(dim=axis, keepdim=True)
    v = x.var(dim=axis, keepdim=True, unbiased=False)
    return (x - m) / torch.sqrt(v + eps)

def _scatter_add(tgt, idx, src, axis=0):
    return tgt.clone().index_add_(axis, idx, src)

def _segment_sum(src, seg, n):
    out = torch.zeros((n,) + src.shape[1:], dtype=src.dtype)
    return out.index_add_(0, seg, src)

def _pad(x, pw):
    flat = tuple((v for pair in reversed(pw) for v in pair))
    return torch.nn.functional.pad(x, flat)
kernel_name = 'adaLN_cond__spectral_gfnet__dense_activation_silu__prompt'

def setup_inputs():

    _w = lambda a: (lambda t: t.to(torch.bfloat16) if t.is_floating_point() else t)(torch.as_tensor(a))

    def _A_setup():
        B, S, D = (1, 2048, 448)
        Df = D // 2 + 1
        return {'x': _w((lambda *s: torch.randn(*s, dtype=torch.bfloat16) * 0.05)(B, S, D)), 'w_r': _w((lambda *s: torch.randn(*s, dtype=torch.bfloat16) * 1.6)(S, Df) * 0.02), 'w_i': _w((lambda *s: torch.randn(*s, dtype=torch.bfloat16) * 1.6)(S, Df) * 0.02)}
    _A_in = _A_setup()

    def _B_setup():
        B, S, D, F = (1, 2048, 448, 1792)
        return {'x': _w((lambda *s: torch.randn(*s, dtype=torch.bfloat16) * 0.05)(B, S, D)), 'w1': _w((lambda *s: torch.randn(*s, dtype=torch.bfloat16) * 0.8)(D, F) * D ** (-0.5)), 'w2': _w((lambda *s: torch.randn(*s, dtype=torch.bfloat16) * 0.2)(F, D) * F ** (-0.5))}
    _B_in = _B_setup()
    return {'A_x': _A_in['x'], 'A_w_r': _A_in['w_r'], 'A_w_i': _A_in['w_i'], 'B_x': _B_in['x'], 'B_w1': _B_in['w1'], 'B_w2': _B_in['w2'], 'c': _w((lambda *s: torch.randn(*s, dtype=torch.bfloat16) * 0.2)(1, 448) * 8.0), 'w_mod': _w((lambda *s: torch.randn(*s, dtype=torch.bfloat16) * 0.2)(448, 6 * 448) * 448 ** (-0.5) * 8.0)}

def reference(A_x, A_w_r, A_w_i, B_x, B_w1, B_w2, c, w_mod):

    def _A_ref(x, w_r, w_i):
        B, S, D = x.shape
        X = (lambda x, axes=(-2, -1): torch.fft.rfft2(x.float(), dim=axes))(x, axes=(-2, -1))
        W = w_r + 1j * w_i
        X = X * W
        y = (lambda x, s, axes=(-2, -1): torch.fft.irfft2(x, s=s, dim=axes).to(torch.bfloat16))(X, (S, D), axes=(-2, -1))
        return y

    def _B_ref(x, w1, w2):
        h = torch.einsum('bsd,df->bsf', x, w1)
        h = _silu(h)
        out = torch.einsum('bsf,fd->bsd', h, w2)
        return out
    x = A_x
    mod = (_silu(c) @ w_mod).reshape(c.shape[0], 6, 1, -1)
    sa, ca, ga, sb, cb, gb = (mod[:, 0].clone(), mod[:, 1].clone(), mod[:, 2].clone(), mod[:, 3].clone(), mod[:, 4].clone(), mod[:, 5].clone())
    h = _layernorm(x, axis=-1) * (1 + ca) + sa
    x = x + ga * _A_ref(h, A_w_r, A_w_i)
    h = _layernorm(x, axis=-1) * (1 + cb) + sb
    x = x + gb * _B_ref(h, B_w1, B_w2)
    return x
```

```python
import sys
NAME="adaLN_cond__spectral_gfnet__dense_activation_silu__prompt"
n_empty = int(sys.argv[1]) if len(sys.argv)>1 else 0
out=[]
def e(s): out.append(s)
S,D,KD,F=2048,448,225,1792
MOD=0; HB=1<<24; ZR=2<<24; ZI=3<<24; XR=4<<24; XI=5<<24; VR=6<<24; VI=7<<24; X1=8<<24; H2=9<<24; HH=10<<24
launches=[]
kern=[]
def srd(d, base, size):
    e(f"s_mov_b32 s{d}, s{base}"); e(f"s_and_b32 s{d+1}, s{base+1}, 0xffff"); e(f"s_mov_b32 s{d+2}, {size}"); e(f"s_mov_b32 s{d+3}, 0x20000")
def srd_ws(d, off, size):
    e(f"s_add_u32 s{d}, s4, {off}"); e(f"s_addc_u32 s{d+1}, s5, 0"); e(f"s_and_b32 s{d+1}, s{d+1}, 0xffff"); e(f"s_mov_b32 s{d+2}, {size}"); e(f"s_mov_b32 s{d+3}, 0x20000")
def begin(name, nthreads, block=256):
    g=(nthreads+block-1)//block
    launches.append(f"; @launch kernel={name} grid=({g},1,1) block=({block},1,1) lds=0")
    kern.append(name)
    e(".text"); e(f".globl {name}"); e(".p2align 8"); e(f".type {name},@function"); e(f"{name}:")
    e(f"s_cmp_ge_u32 s2, {g}"); e(f"s_cbranch_scc1 {name}_end")
    e("s_load_dwordx2 s[4:5], s[0:1], 80")
    e("s_load_dwordx16 s[40:55], s[0:1], 0")
    e("s_load_dwordx2 s[56:57], s[0:1], 64")
    e(f"s_mul_i32 s3, s2, {block}"); e("v_add_u32 v1, s3, v0")
    e("s_waitcnt lgkmcnt(0)")
def end(name):
    e("s_waitcnt vmcnt(0)")
    e(f"{name}_end:"); e("s_endpgm")
def divmod_const(q, r, x, c):
    sh=0; cc=c
    while cc%2==0: cc//=2; sh+=1
    magic=( (1<<32)+cc-1)//cc
    e(f"v_lshrrev_b32 v{q}, {sh}, v{x}")
    e(f"s_mov_b32 s30, {magic}"); e(f"v_mul_hi_u32 v{q}, v{q}, s30"); e(f"s_mov_b32 s30, {c}"); e(f"v_mul_lo_u32 v{r}, v{q}, s30"); e(f"v_sub_u32 v{r}, v{x}, v{r}")
def rbf16(v, t):
    e(f"v_cvt_pk_bf16_f32 v{v}, v{v}, v{v}"); e(f"v_and_b32 v{v}, 0xffff0000, v{v}")
def silu(v,t):
    e(f"v_mul_f32 v{t}, 0xbfb8aa3b, v{v}"); e(f"v_exp_f32 v{t}, v{t}"); e("s_nop 1"); e(f"v_add_f32 v{t}, 1.0, v{t}"); e(f"v_rcp_f32 v{t}, v{t}"); e("s_nop 1"); e(f"v_mul_f32 v{v}, v{v}, v{t}")

begin("mod_kernel", 2688)
srd(8,52,896); srd(12,54,448*5376); srd_ws(16,MOD,2688*4)
e("v_lshlrev_b32 v2, 1, v1"); e("v_mov_b32 v3, 0"); e("v_mov_b32 v4, 0"); e("s_mov_b32 s20, 0")
e("mod_loop:")
e("buffer_load_ushort v5, v3, s[8:11], 0 offen"); e("buffer_load_ushort v6, v2, s[12:15], 0 offen"); e("s_waitcnt vmcnt(0)")
e("v_lshlrev_b32 v5, 16, v5"); e("v_lshlrev_b32 v6, 16, v6"); silu(5,7); rbf16(5,7); e("v_fmac_f32 v4, v5, v6")
e("v_add_u32 v3, 2, v3"); e("v_add_u32 v2, 5376, v2"); e("s_add_u32 s20, s20, 1"); e("s_cmp_lt_u32 s20, 448"); e("s_cbranch_scc1 mod_loop")
rbf16(4,7)
e("v_lshlrev_b32 v2, 2, v1"); e("buffer_store_dword v4, v2, s[16:19], 0 offen")
end("mod_kernel")

def ln_kernel(name, src_is_bf16, src_off, dst_off, shift_idx, scale_idx):
    begin(name, S, 64)
    if src_is_bf16: srd(8,40,S*D*2)
    else: srd_ws(8,src_off,S*D*4)
    srd_ws(12,MOD,2688*4); srd_ws(16,dst_off,S*D*4)
    es = 2 if src_is_bf16 else 4
    ld = "buffer_load_ushort" if src_is_bf16 else "buffer_load_dword"
    e(f"v_mul_u32_u24 v2, {D*es}, v1"); e("v_mov_b32 v3, v2"); e("v_mov_b32 v4, 0"); e("s_mov_b32 s20, 0")
    e(f"{name}_l1:"); e(f"{ld} v5, v3, s[8:11], 0 offen"); e("s_waitcnt vmcnt(0)")
    if src_is_bf16: e("v_lshlrev_b32 v5, 16, v5")
    e("v_add_f32 v4, v4, v5"); e(f"v_add_u32 v3, {es}, v3"); e("s_add_u32 s20, s20, 1"); e("s_cmp_lt_u32 s20, 448"); e(f"s_cbranch_scc1 {name}_l1")
    e("v_mul_f32 v4, 0x3b124925, v4")
    e("v_mov_b32 v3, v2"); e("v_mov_b32 v6, 0"); e("s_mov_b32 s20, 0")
    e(f"{name}_l2:"); e(f"{ld} v5, v3, s[8:11], 0 offen"); e("s_waitcnt vmcnt(0)")
    if src_is_bf16: e("v_lshlrev_b32 v5, 16, v5")
    e("v_sub_f32 v5, v5, v4"); e("v_fmac_f32 v6, v5, v5"); e(f"v_add_u32 v3, {es}, v3"); e("s_add_u32 s20, s20, 1"); e("s_cmp_lt_u32 s20, 448"); e(f"s_cbranch_scc1 {name}_l2")
    e("v_mul_f32 v6, 0x3b124925, v6"); e("v_add_f32 v6, 0x3727c5ac, v6"); e("v_rsq_f32 v6, v6")
    e("v_mov_b32 v3, v2"); e(f"v_mul_u32_u24 v7, {D*4}, v1"); e(f"v_mov_b32 v8, {shift_idx*448*4}"); e(f"v_mov_b32 v9, {scale_idx*448*4}"); e("s_mov_b32 s20, 0")
    e(f"{name}_l3:"); e(f"{ld} v5, v3, s[8:11], 0 offen"); e("buffer_load_dword v10, v8, s[12:15], 0 offen"); e("buffer_load_dword v11, v9, s[12:15], 0 offen"); e("s_waitcnt vmcnt(0)")
    if src_is_bf16: e("v_lshlrev_b32 v5, 16, v5")
    e("v_sub_f32 v5, v5, v4"); e("v_mul_f32 v5, v5, v6"); e("v_add_f32 v11, 1.0, v11"); rbf16(11,12); e("v_fma_f32 v5, v5, v11, v10"); rbf16(5,12)
    e("buffer_store_dword v5, v7, s[16:19], 0 offen")
    e(f"v_add_u32 v3, {es}, v3"); e("v_add_u32 v7, 4, v7"); e("v_add_u32 v8, 4, v8"); e("v_add_u32 v9, 4, v9"); e("s_add_u32 s20, s20, 1"); e("s_cmp_lt_u32 s20, 448"); e(f"s_cbranch_scc1 {name}_l3")
    end(name)
ln_kernel("ln1_kernel", True, 0, HB, 0, 1)

begin("dftd_kernel", S*KD)
srd_ws(8,HB,S*D*4); srd_ws(12,ZR,S*KD*4); srd_ws(16,ZI,S*KD*4)
divmod_const(2,3,1,KD)
e(f"v_mul_u32_u24 v4, {D*4}, v2"); e("v_mov_b32 v5, 0"); e("v_mov_b32 v6, 0"); e("v_mov_b32 v7, 0"); e("s_mov_b32 s20, 0")
e("dftd_loop:"); e("buffer_load_dword v8, v4, s[8:11], 0 offen")
e("v_cvt_f32_u32 v9, v7"); e("v_mul_f32 v9, 0x3b124925, v9"); e("v_cos_f32 v10, v9"); e("v_sin_f32 v11, v9"); e("s_waitcnt vmcnt(0)")
e("v_fmac_f32 v5, v8, v10"); e("v_fma_f32 v6, -v8, v11, v6")
e("v_add_u32 v7, v7, v3"); e("v_subrev_u32 v12, 448, v7"); e("v_min_u32 v7, v7, v12")
e("v_add_u32 v4, 4, v4"); e("s_add_u32 s20, s20, 1"); e("s_cmp_lt_u32 s20, 448"); e("s_cbranch_scc1 dftd_loop")
e("v_lshlrev_b32 v4, 2, v1"); e("buffer_store_dword v5, v4, s[12:15], 0 offen"); e("buffer_store_dword v6, v4, s[16:19], 0 offen")
end("dftd_kernel")

def sdft(name, sr, si, dr, di, inverse):
    begin(name, S*KD)
    srd_ws(8,sr,S*KD*4); srd_ws(12,si,S*KD*4); srd_ws(16,dr,S*KD*4); srd_ws(20,di,S*KD*4)
    srd(24,42,S*KD*2); srd(32,44,S*KD*2)
    divmod_const(2,3,1,KD)
    e("v_lshlrev_b32 v4, 2, v3"); e("v_mov_b32 v5, 0"); e("v_mov_b32 v6, 0"); e("v_mov_b32 v7, 0"); e("s_mov_b32 s29, 0")
    e(f"{name}_loop:"); e("buffer_load_dword v8, v4, s[8:11], 0 offen"); e("buffer_load_dword v13, v4, s[12:15], 0 offen")
    e("v_cvt_f32_u32 v9, v7"); e("v_mul_f32 v9, 0x3a000000, v9"); e("v_cos_f32 v10, v9"); e("v_sin_f32 v11, v9"); e("s_nop 1")
    if not inverse: e("v_sub_f32 v11, 0, v11")
    e("s_waitcnt vmcnt(0)")
    e("v_fmac_f32 v5, v8, v10"); e("v_fma_f32 v5, -v13, v11, v5"); e("v_fmac_f32 v6, v8, v11"); e("v_fmac_f32 v6, v13, v10")
    e("v_add_u32 v7, v7, v2"); e("v_and_b32 v7, 2047, v7")
    e(f"v_add_u32 v4, {KD*4}, v4"); e("s_add_u32 s29, s29, 1"); e("s_cmp_lt_u32 s29, 2048"); e(f"s_cbranch_scc1 {name}_loop")
    if not inverse:
        e("v_lshlrev_b32 v4, 1, v1"); e("buffer_load_ushort v8, v4, s[24:27], 0 offen"); e("buffer_load_ushort v9, v4, s[32:35], 0 offen"); e("s_waitcnt vmcnt(0)")
        e("v_lshlrev_b32 v8, 16, v8"); e("v_lshlrev_b32 v9, 16, v9")
        e("v_mul_f32 v10, v5, v8"); e("v_fma_f32 v10, -v6, v9, v10"); e("v_mul_f32 v11, v5, v9"); e("v_fmac_f32 v11, v6, v8"); e("v_mov_b32 v5, v10"); e("v_mov_b32 v6, v11")
    e("v_lshlrev_b32 v4, 2, v1"); e("buffer_store_dword v5, v4, s[16:19], 0 offen"); e("buffer_store_dword v6, v4, s[20:23], 0 offen")
    end(name)
sdft("sfwd_kernel", ZR, ZI, XR, XI, False)
sdft("sinv_kernel", XR, XI, VR, VI, True)

begin("idftd_kernel", S*D)
srd_ws(8,VR,S*KD*4); srd_ws(12,VI,S*KD*4); srd_ws(16,X1,S*D*4); srd_ws(20,MOD,2688*4); srd(24,40,S*D*2)
divmod_const(2,3,1,D)
e(f"v_mul_u32_u24 v4, {KD*4}, v2"); e("v_mov_b32 v5, 0"); e("v_mov_b32 v7, 0"); e("s_mov_b32 s29, 0")
e("idftd_loop:"); e("buffer_load_dword v8, v4, s[8:11], 0 offen"); e("buffer_load_dword v13, v4, s[12:15], 0 offen")
e("v_cvt_f32_u32 v9, v7"); e("v_mul_f32 v9, 0x3b124925, v9"); e("v_cos_f32 v10, v9"); e("v_sin_f32 v11, v9")
e("s_cmp_eq_u32 s29, 0"); e("s_cselect_b32 s30, 1, 0"); e("s_cmp_eq_u32 s29, 224"); e("s_cselect_b32 s30, 1, s30"); e("s_cmp_eq_u32 s30, 1")
e("s_cselect_b32 s31, 1.0, 2.0"); e("s_cselect_b32 s28, 0, 2.0")
e("v_mul_f32 v10, s31, v10"); e("v_mul_f32 v11, s28, v11")
e("s_waitcnt vmcnt(0)")
e("v_fmac_f32 v5, v8, v10"); e("v_fma_f32 v5, -v13, v11, v5")
e("v_add_u32 v7, v7, v3"); e("v_subrev_u32 v12, 448, v7"); e("v_min_u32 v7, v7, v12")
e("v_add_u32 v4, 4, v4"); e("s_add_u32 s29, s29, 1"); e("s_cmp_lt_u32 s29, 225"); e("s_cbranch_scc1 idftd_loop")
import struct
inv=struct.unpack("<I",struct.pack("<f",1.0/(S*D)))[0]
e(f"v_mul_f32 v5, {hex(inv)}, v5"); rbf16(5,12)
e("v_lshlrev_b32 v4, 2, v3"); e(f"v_add_u32 v4, {2*448*4}, v4"); e("buffer_load_dword v8, v4, s[20:23], 0 offen")
e("v_lshlrev_b32 v4, 1, v1"); e("buffer_load_ushort v9, v4, s[24:27], 0 offen"); e("s_waitcnt vmcnt(0)")
e("v_lshlrev_b32 v9, 16, v9"); e("v_mul_f32 v5, v5, v8"); rbf16(5,12); e("v_add_f32 v5, v5, v9"); rbf16(5,12)
e("v_lshlrev_b32 v4, 2, v1"); e("buffer_store_dword v5, v4, s[16:19], 0 offen")
end("idftd_kernel")
ln_kernel("ln2_kernel", False, X1, H2, 3, 4)

begin("mlp1_kernel", S*F)
srd_ws(8,H2,S*D*4); srd(12,48,D*F*2); srd_ws(16,HH,S*F*4)
divmod_const(2,3,1,F)
e(f"v_mul_u32_u24 v4, {D*4}, v2"); e("v_lshlrev_b32 v6, 1, v3"); e("v_mov_b32 v5, 0"); e("s_mov_b32 s29, 0")
e("mlp1_loop:"); e("buffer_load_dword v8, v4, s[8:11], 0 offen"); e("buffer_load_ushort v9, v6, s[12:15], 0 offen"); e("s_waitcnt vmcnt(0)")
e("v_lshlrev_b32 v9, 16, v9"); e("v_fmac_f32 v5, v8, v9"); e("v_add_u32 v4, 4, v4"); e(f"v_add_u32 v6, {F*2}, v6")
e("s_add_u32 s29, s29, 1"); e("s_cmp_lt_u32 s29, 448"); e("s_cbranch_scc1 mlp1_loop")
rbf16(5,12); silu(5,7); rbf16(5,12)
e("v_lshlrev_b32 v4, 2, v1"); e("buffer_store_dword v5, v4, s[16:19], 0 offen")
end("mlp1_kernel")
begin("mlp2_kernel", S*D)
srd_ws(8,HH,S*F*4); srd(12,50,D*F*2); srd_ws(16,X1,S*D*4); srd_ws(20,MOD,2688*4); srd(24,56,S*D*2)
divmod_const(2,3,1,D)
e(f"v_mul_u32_u24 v4, {F*4}, v2"); e("v_lshlrev_b32 v6, 1, v3"); e("v_mov_b32 v5, 0"); e("s_mov_b32 s29, 0")
e("mlp2_loop:"); e("buffer_load_dword v8, v4, s[8:11], 0 offen"); e("buffer_load_ushort v9, v6, s[12:15], 0 offen"); e("s_waitcnt vmcnt(0)")
e("v_lshlrev_b32 v9, 16, v9"); e("v_fmac_f32 v5, v8, v9"); e("v_add_u32 v4, 4, v4"); e(f"v_add_u32 v6, {D*2}, v6")
e("s_add_u32 s29, s29, 1"); e("s_cmp_lt_u32 s29, 1792"); e("s_cbranch_scc1 mlp2_loop")
rbf16(5,12)
e("v_lshlrev_b32 v4, 2, v3"); e(f"v_add_u32 v4, {5*448*4}, v4"); e("buffer_load_dword v8, v4, s[20:23], 0 offen")
e("v_lshlrev_b32 v4, 2, v1"); e("buffer_load_dword v9, v4, s[16:19], 0 offen"); e("s_waitcnt vmcnt(0)")
e("v_mul_f32 v5, v5, v8"); rbf16(5,12); e("v_add_f32 v5, v5, v9")
e("v_cvt_pk_bf16_f32 v5, v5, v5"); e("v_lshlrev_b32 v4, 1, v1"); e("buffer_store_short v5, v4, s[24:27], 0 offen")
end("mlp2_kernel")
e(".text"); e(".globl empty_kernel"); e(".p2align 8"); e(".type empty_kernel,@function"); e("empty_kernel:"); e("s_endpgm")
kern.append("empty_kernel")
for i in range(n_empty): launches.append("; @launch kernel=empty_kernel grid=(256,1,1) block=(256,1,1) lds=0")
e('.section .rodata,"a"')
for k in kern:
    e(".p2align 6"); e(f".amdhsa_kernel {k}")
    for l in ["next_free_vgpr 32","next_free_sgpr 96","accum_offset 32","group_segment_fixed_size 0","kernarg_size 88","user_sgpr_count 2","user_sgpr_kernarg_segment_ptr 1","system_sgpr_workgroup_id_x 1"]:
        e("  .amdhsa_"+l)
    e(".end_amdhsa_kernel")
print("\n".join(launches)); print('.amdgcn_target "amdgcn-amd-amdhsa--gfx950"'); print("\n".join(out))
```
